```python
import torch

def _softmax(x, axis=-1):
    return torch.softmax(x, dim=axis)
def _gelu(x):
    return torch.nn.functional.gelu(x, approximate="tanh")
def _silu(x):
    return torch.nn.functional.silu(x)
def _sigmoid(x):
    return torch.sigmoid(x)
def _layernorm(x, axis=-1, eps=1e-5):
    m = x.mean(dim=axis, keepdim=True)
    v = x.var(dim=axis, keepdim=True, unbiased=False)
    return (x - m) / torch.sqrt(v + eps)
def _scatter_add(tgt, idx, src, axis=0):
    return tgt.clone().index_add_(axis, idx, src)
def _segment_sum(src, seg, n):
    out = torch.zeros((n,) + src.shape[1:], dtype=src.dtype)
    return out.index_add_(0, seg, src)
def _pad(x, pw):
    flat = tuple(v for pair in reversed(pw) for v in pair)
    return torch.nn.functional.pad(x, flat)

kernel_name = 'parallel_sum__mha_block__mixer_s_mlp__prompt'

def setup_inputs():

    _w = (lambda a: (lambda t: t.to(torch.bfloat16) if t.is_floating_point() else t)(torch.as_tensor(a)))
    def _A_setup():
        B, S, D, H = 1, 2048, 512, 32
        return {
            "x": _w((lambda *s: torch.randn(*s, dtype=torch.bfloat16) * 0.05)(B, S, D)),
            "wqkv": _w((lambda *s: torch.randn(*s, dtype=torch.bfloat16) * 0.1)(D, 3 * D)),
            "wo": _w((lambda *s: torch.randn(*s, dtype=torch.bfloat16) * 0.05)(D, D)),
        }
    _A_in = _A_setup()

    def _B_setup():
        B, S, D, F = 1, 2048, 512, 1376
        return {
            "x":  _w((lambda *s: torch.randn(*s, dtype=torch.bfloat16) * 0.05)(B, S, D)),
            "w1": _w((lambda *s: torch.randn(*s, dtype=torch.bfloat16) * 3.2)(D, D) * (D ** -0.5)),
            "w2": _w((lambda *s: torch.randn(*s, dtype=torch.bfloat16) * 3.2)(D, D) * (D ** -0.5)),
            "w3": _w((lambda *s: torch.randn(*s, dtype=torch.bfloat16) * 3.2)(D, F) * (D ** -0.5)),
            "w4": _w((lambda *s: torch.randn(*s, dtype=torch.bfloat16) * 3.2)(F, D) * (F ** -0.5)),
        }
    _B_in = _B_setup()

    return {
        "A_x": _A_in["x"],
        "A_wqkv": _A_in["wqkv"],
        "A_wo": _A_in["wo"],
        "B_x": _B_in["x"],
        "B_w1": _B_in["w1"],
        "B_w2": _B_in["w2"],
        "B_w3": _B_in["w3"],
        "B_w4": _B_in["w4"],
    }

def reference(A_x, A_wqkv, A_wo, B_x, B_w1, B_w2, B_w3, B_w4):
    def _A_ref(x, wqkv, wo):
        B, S, D = x.shape
        H = 32
        Dh = D // H
        qkv = (lambda x, *d: x.permute(*d))((x @ wqkv).reshape(B, S, 3, H, Dh), 2, 0, 3, 1, 4)
        q, k, v = qkv[0], qkv[1], qkv[2]
        scores = torch.einsum("bhqd,bhkd->bhqk", q, k) * (Dh ** -0.5)
        p = _softmax(scores, axis=-1)
        o = torch.einsum("bhqk,bhkd->bhqd", p, v)
        return (lambda x, *d: x.permute(*d))(o, 0, 2, 1, 3).reshape(B, S, D) @ wo

    def _B_ref(x, w1, w2, w3, w4):
        B, S, D = x.shape
        h = _gelu(_layernorm(x, axis=-1) @ w1)
        c = D // 4
        g0 = _pad(h[:, :, 0*c:1*c], ((0, 0), (1, 0), (0, 0)))[:, :S, :]
        g1 = _pad(h[:, :, 1*c:2*c], ((0, 0), (0, 1), (0, 0)))[:, 1:, :]
        g2 = _pad(h[:, :, 2*c:3*c], ((0, 0), (2, 0), (0, 0)))[:, :S, :]
        g3 = _pad(h[:, :, 3*c:   ], ((0, 0), (0, 2), (0, 0)))[:, 2:, :]
        hs = torch.concatenate([g0, g1, g2, g3], axis=-1) @ w2
        x1 = x + hs
        h2 = _gelu(_layernorm(x1, axis=-1) @ w3) @ w4
        return x1 + h2

    x = A_x
    xn = _layernorm(x, axis=-1)
    return x + _A_ref(xn, A_wqkv, A_wo) + _B_ref(xn, B_w1, B_w2, B_w3, B_w4)
```

```python
import sys
sys.path.insert(0, "bench")

HEAD = """; @launch kernel=k0_kernel grid=(1,1,1) block=(64,1,1) lds=0
.amdgcn_target "amdgcn-amd-amdhsa--gfx950"
.text
"""

def kernel(name, body, iters, bodyB=None):
    s = []
    s.append(f".globl {name}\n.p2align 8\n.type {name},@function\n{name}:")
    s.append("s_load_dwordx2 s[4:5], s[0:1], 0")
    for i in range(1, 128):
        s.append(f"v_mov_b32 v{i}, 0.5")
    s.append("v_and_b32 v119, 63, v0\nv_lshlrev_b32 v119, 3, v119\nv_lshrrev_b32 v120, 6, v0")
    s.append("s_nop 1")
    s.append("v_readfirstlane_b32 s20, v120")
    s.append("s_waitcnt lgkmcnt(0)")
    s.append("s_mov_b32 s8, s4\ns_mov_b32 s9, s5\ns_mov_b32 s10, 0x100000\ns_mov_b32 s11, 0x20000")
    s.append("s_barrier")
    s.append("s_memtime s[12:13]")
    s.append(f"s_mov_b32 s16, {iters}")
    s.append("s_waitcnt lgkmcnt(0)")
    if bodyB is not None:
        s.append("s_cmp_ge_u32 s20, 4")
        s.append(f"s_cbranch_scc1 {name}_B")
    s.append(".p2align 6")
    s.append(f"{name}_L:")
    s += body
    s.append("s_sub_u32 s16, s16, 1\ns_cmp_lg_u32 s16, 0")
    s.append(f"s_cbranch_scc1 {name}_L")
    if bodyB is not None:
        s.append(f"s_branch {name}_E")
        s.append(".p2align 6")
        s.append(f"{name}_B:")
        s += bodyB
        s.append("s_sub_u32 s16, s16, 1\ns_cmp_lg_u32 s16, 0")
        s.append(f"s_cbranch_scc1 {name}_B")
        s.append(f"{name}_E:")
    s.append("s_nop 15\ns_nop 15")
    s.append("s_memtime s[14:15]")
    s.append("s_waitcnt lgkmcnt(0)")
    s.append("s_sub_u32 s14, s14, s12")
    s.append("v_mov_b32 v1, s14")
    s.append("s_lshl_b32 s17, s2, 4\ns_add_u32 s17, s17, s20\ns_lshl_b32 s17, s17, 2")
    s.append("v_mov_b32 v2, s17")
    s.append("buffer_store_dword v1, v2, s[8:11], 0 offen")
    s.append("s_waitcnt vmcnt(0)")
    s.append("s_endpgm")
    kd = f""".section .rodata,"a"
.p2align 6
.amdhsa_kernel {name}
  .amdhsa_next_free_vgpr 128
  .amdhsa_next_free_sgpr 32
  .amdhsa_accum_offset 128
  .amdhsa_group_segment_fixed_size 0
  .amdhsa_kernarg_size 8
  .amdhsa_user_sgpr_count 2
  .amdhsa_user_sgpr_kernarg_segment_ptr 1
  .amdhsa_system_sgpr_workgroup_id_x 1
.end_amdhsa_kernel
.text
"""
    return "\n".join(s) + "\n" + kd

def rep(fmt, n, base=0):
    return [fmt.format(d=base + i, s=64 + i, d2=base + 2 * i, d2p=base + 2 * i + 1, s2=64 + 2 * (i % 16), s2p=65 + 2 * (i % 16)) for i in range(n)]

EXP = rep("v_exp_f32 v{d}, v{s}", 16, 1)
FMA = rep("v_fma_f32 v{d}, v{s}, v100, v101", 16, 1)
ADD = rep("v_add_f32 v{d}, v{s}, v100", 16, 1)
CVT = rep("v_cvt_pk_bf16_f32 v{d}, v{s}, v100", 16, 1)
PERM = rep("v_perm_b32 v{d}, v{s}, v100, v101", 16, 1)
PKM = rep("v_pk_mul_f32 v[{d2}:{d2p}], v[{s2}:{s2p}], v[100:101]", 16, 2)
PKF = rep("v_pk_fma_f32 v[{d2}:{d2p}], v[{s2}:{s2p}], v[100:101], v[102:103]", 16, 2)
MAX3 = rep("v_max3_f32 v{d}, v{s}, v100, v101", 16, 1)
EXP16 = rep("v_exp_f16 v{d}, v{s}", 16, 1)
RCP = rep("v_rcp_f32 v{d}, v{s}", 16, 1)
SWAP = [f"v_permlane32_swap_b32 v{1+2*i}, v{2+2*i}" for i in range(16)]
SWAP16 = [f"v_permlane16_swap_b32 v{1+2*i}, v{2+2*i}" for i in range(16)]
M32 = [f"v_mfma_f32_32x32x16_bf16 v[{16*(i%2)}:{16*(i%2)+15}], v[64:67], v[68:71], v[{16*(i%2)}:{16*(i%2)+15}]" for i in range(8)]
M16 = [f"v_mfma_f32_16x16x32_bf16 v[{4*(i%4)}:{4*(i%4)+3}], v[64:67], v[68:71], v[{4*(i%4)}:{4*(i%4)+3}]" for i in range(8)]
M32L = [f"v_mfma_f32_32x32x8_bf16 v[{16*(i%2)}:{16*(i%2)+15}], v[64:65], v[68:69], v[{16*(i%2)}:{16*(i%2)+15}]" for i in range(8)]
M16L = [f"v_mfma_f32_16x16x16_bf16 v[{4*(i%4)}:{4*(i%4)+3}], v[64:65], v[68:69], v[{4*(i%4)}:{4*(i%4)+3}]" for i in range(8)]

def attn_block(sa, sb, pv32=True):
    o = []
    o.append(f"v_mfma_f32_32x32x16_bf16 v[{sb}:{sb+15}], v[64:67], v[68:71], 0")
    for h in range(2):
        for i in range(8):
            o.append(f"v_exp_f32 v{sa+8*h+i}, v{sa+8*h+i}")
        for i in range(4):
            o.append(f"v_cvt_pk_bf16_f32 v{72+4*h+i}, v{sa+8*h+2*i}, v{sa+8*h+2*i+1}")
        if pv32:
            o.append("s_nop 1")
            o.append(f"v_mfma_f32_32x32x16_bf16 v[48:63], v[80:83], v[{72+4*h}:{75+4*h}], v[48:63]")
    if not pv32:
        o.append("s_nop 1")
        o.append("v_mfma_f32_16x16x32_bf16 v[48:51], v[80:83], v[72:75], v[48:51]")
        o.append("v_mfma_f32_16x16x32_bf16 v[52:55], v[80:83], v[76:79], v[52:55]")
    return o

def attn_block2(sa, sb):
    o = []
    o.append(f"v_mfma_f32_32x32x16_bf16 v[{sb}:{sb+15}], v[64:67], v[68:71], 0")
    for h in range(2):
        for i in range(8):
            o.append(f"v_exp_f32 v{sa+8*h+i}, v{sa+8*h+i}")
            if i == 2:
                p = 72 + 4 * (1 - h)
                o.append(f"v_mfma_f32_32x32x16_bf16 v[48:63], v[80:83], v[{p}:{p+3}], v[48:63]")
        for i in range(4):
            o.append(f"v_cvt_pk_bf16_f32 v{72+4*h+i}, v{sa+8*h+2*i}, v{sa+8*h+2*i+1}")
    return o

ATT = attn_block(16, 32) + attn_block(32, 16)
ATT2 = attn_block2(16, 32) + attn_block2(32, 16)
ATT16 = attn_block(16, 32, False) + attn_block(32, 16, False)
mix = []
for a, b in zip(EXP, rep("v_fma_f32 v{d}, v{s}, v100, v101", 16, 20)):
    mix += [a, b]

DOT = rep("v_dot2_f32_bf16 v{d}, v{s}, v100, v{d}", 16, 1)
DOTC = rep("v_dot2c_f32_bf16 v{d}, v{s}, v100", 16, 1)
MOV = rep("v_mov_b32 v{d}, v{s}", 16, 1)
MOVS = rep("v_mov_b32_sdwa v{d}, v{s} dst_sel:WORD_0 dst_unused:UNUSED_PRESERVE src0_sel:WORD_1", 16, 1)
AND = rep("v_and_b32 v{d}, v{s}, v100", 16, 1)
SHL = rep("v_lshlrev_b32 v{d}, 16, v{s}", 16, 1)
MUL = rep("v_mul_f32 v{d}, v{s}, v100", 16, 1)
MAX = rep("v_max_f32 v{d}, v{s}, v100", 16, 1)
ADDU = rep("v_add_u32 v{d}, v{s}, v100", 16, 1)
ACCR = rep("v_fmac_f32 v{d}, v{s}, v100", 16, 1)
DPP = rep("v_add_f32_dpp v{d}, v{s}, v100 row_shr:1 row_mask:0xf bank_mask:0xf", 16, 1)
def inter(m, f, n):
    o = []
    for i, x in enumerate(m):
        o.append(x)
        o += [f[(i * n + k) % len(f)] for k in range(n)]
    return o
M32b = [f"v_mfma_f32_32x32x16_bf16 v[{32+16*(i%2)}:{32+16*(i%2)+15}], v[104:107], v[108:111], v[{32+16*(i%2)}:{32+16*(i%2)+15}]" for i in range(8)]
E8C4 = EXP[:8] + CVT[8:12] + EXP[:8] + CVT[8:12]
E8M4 = EXP[:8] + MOVS[8:12] + EXP[:8] + MOVS[8:12]
E8F4 = EXP[:8] + FMA[8:12] + EXP[:8] + FMA[8:12]
SM = [f"v_smfmac_f32_32x32x32_bf16 v[{32+16*(i%2)}:{32+16*(i%2)+15}], v[104:107], v[108:115], v116" for i in range(8)]
M4 = [f"v_mfma_f32_4x4x4_16b_bf16 v[{4*(i%3)}:{4*(i%3)+3}], v[104:105], v[108:109], v[{4*(i%3)}:{4*(i%3)+3}]" for i in range(6)]
M16b = [f"v_mfma_f32_16x16x32_bf16 v[{4*(i%3)}:{4*(i%3)+3}], v[104:107], v[108:111], v[{4*(i%3)}:{4*(i%3)+3}]" for i in range(3)]
PKA = rep("v_pk_add_f32 v[{d2}:{d2p}], v[{s2}:{s2p}], v[100:101]", 8, 2)
def bstep(ncb, salu=3, lds=True, dep=True, k=0):
    o = []
    if lds:
        o.append("s_waitcnt lgkmcnt(0)")
        for cb in range(ncb):
            o.append(f"ds_read_b64_tr_b16 v[{84+12*k+4*cb}:{85+12*k+4*cb}], v119 offset:{cb*64}")
            o.append(f"ds_read_b64_tr_b16 v[{86+12*k+4*cb}:{87+12*k+4*cb}], v119 offset:{cb*64+512}")
    for cb in range(ncb):
        a = 16 * cb if dep else 16 * ((cb + k) % 2)
        o.append(f"v_mfma_f32_32x32x16_bf16 v[{a}:{a+15}], v[{96-12*k+4*cb}:{99-12*k+4*cb}], v[68:71], v[{a}:{a+15}]")
    o += ["s_add_u32 s21, s21, 1"] * salu
    return o
def P(n, body):
    return [f"s_setprio {n}"] + body
B1 = bstep(1, k=0) + bstep(1, k=1)
B3 = bstep(3, k=0) + bstep(3, k=1)
B1n = bstep(1, lds=False, salu=0, k=0) + bstep(1, lds=False, salu=0, k=1)
B1i = bstep(1, lds=False, salu=0, dep=False, k=0) + bstep(1, lds=False, salu=0, dep=False, k=1)
SAL = ["s_add_u32 s21, s21, 1"] * 32
LDSR = ["ds_read_b64_tr_b16 v[84:85], v119", "ds_read_b64_tr_b16 v[86:87], v119 offset:512", "s_waitcnt lgkmcnt(0)"] * 4
GEL = FMA[:8] + EXP[:4] + FMA[:4] + RCP[:4] + FMA[:4]
TESTS = []
for nm, b in (("B1", B1 * 4), ("B3", B3 * 2), ("B1nolds", B1n * 4), ("B1indep", B1i * 4), ("salu", SAL * 2), ("lds", LDSR), ("gelu", GEL * 2)):
    TESTS.append((nm + " alone", b, None))
    for pa, pb in ((0, 0), (0, 2), (2, 0)):
        TESTS.append((f"att p{pa} | {nm} p{pb}", P(pa, ATT2), P(pb, b)))
ITERS = 500
UNR = 8

if __name__ == "__main__":
    if sys.argv[1] == "gen":
        lines = "".join(f"; @launch kernel=t{i}_kernel grid=(1,1,1) block=(1024,1,1) lds=0\n" for i in range(len(TESTS)))
        src = lines + '.amdgcn_target "amdgcn-amd-amdhsa--gfx950"\n.text\n'
        for i, (n, b, bb) in enumerate(TESTS):
            src += kernel(f"t{i}_kernel", b * UNR, ITERS, None if bb is None else bb * UNR)
        open("valu.s", "w").write(src)
    else:
        from runlib import *
        asm, co = build("valu.s", 1)
        k = cl.AsmKernelList(co, cl.parse_launch_list(asm))
        out = cl.DeviceBuffer(1 << 20)
        ka = struct.pack("<Q", out.ptr)
        for grid in (256,):
            print("grid", grid)
            for i, (n, b, bb) in enumerate(TESTS):
                row = []
                for blk in (256, 512):
                    if bb is not None and blk != 512:
                        continue
                    for _ in range(2):
                        cl._launch_function(k._funcs[f"t{i}_kernel"], (grid, 1, 1), (blk, 1, 1), ka, 8192, None)
                        sync()
                    r = out.to_numpy(np.uint32, (256, 16))[:grid, : blk // 64]
                    if bb is None:
                        row.append(f"w{blk//256}: {r.max()/ITERS/UNR/(blk//256):8.2f}")
                    else:
                        row.append(f"A: {r[:, :4].max()/ITERS/UNR:8.2f} B: {r[:, 4:].max()/ITERS/UNR:8.2f}")
                print(f"{n:26s} n={len(b):3d}", "  ".join(row))
```
